```python
import torch

def _softmax(x, axis=-1):
    return torch.softmax(x, dim=axis)
def _gelu(x):
    return torch.nn.functional.gelu(x, approximate="tanh")
def _silu(x):
    return torch.nn.functional.silu(x)
def _sigmoid(x):
    return torch.sigmoid(x)
def _layernorm(x, axis=-1, eps=1e-5):
    m = x.mean(dim=axis, keepdim=True)
    v = x.var(dim=axis, keepdim=True, unbiased=False)
    return (x - m) / torch.sqrt(v + eps)
def _scatter_add(tgt, idx, src, axis=0):
    return tgt.clone().index_add_(axis, idx, src)
def _segment_sum(src, seg, n):
    out = torch.zeros((n,) + src.shape[1:], dtype=src.dtype)
    return out.index_add_(0, seg, src)
def _pad(x, pw):
    flat = tuple(v for pair in reversed(pw) for v in pair)
    return torch.nn.functional.pad(x, flat)

kernel_name = 'recurrent_scan__ssm_conv_s5__mixer_token_mlp__prompt'

def setup_inputs():

    _w = (lambda a: (lambda t: t.to(torch.bfloat16) if t.is_floating_point() else t)(torch.as_tensor(a)))
    def _A_setup():
        B, S, D = 1, 2048, 512
        P = D
        Lambda_re = -0.5 * (lambda _x: torch.exp(torch.as_tensor(_x)))((lambda *s: torch.randn(*s, dtype=torch.bfloat16) * 0.4)(P))
        Lambda_im = (lambda *s: torch.randn(*s, dtype=torch.bfloat16) * 0.8)(P) * 1.0
        B_re = (lambda *s: torch.randn(*s, dtype=torch.bfloat16) * 0.4)(P, D) * (D ** -0.5)
        B_im = (lambda *s: torch.randn(*s, dtype=torch.bfloat16) * 0.4)(P, D) * (D ** -0.5)
        C_re = (lambda *s: torch.randn(*s, dtype=torch.bfloat16) * 0.4)(D, P) * (P ** -0.5)
        C_im = (lambda *s: torch.randn(*s, dtype=torch.bfloat16) * 0.4)(D, P) * (P ** -0.5)
        log_dt = (lambda *s: torch.randn(*s, dtype=torch.bfloat16) * 0.4)(P) * 0.3 - 2.0
        Dskip = (lambda *s: torch.randn(*s, dtype=torch.bfloat16) * 0.2)(D)
        return {
            "x": _w((lambda *s: torch.randn(*s, dtype=torch.bfloat16) * 0.05)(B, S, D)),
            "Lambda_re": _w(Lambda_re),
            "Lambda_im": _w(Lambda_im),
            "B_re": _w(B_re),
            "B_im": _w(B_im),
            "C_re": _w(C_re),
            "C_im": _w(C_im),
            "log_dt": _w(log_dt),
            "Dskip": _w(Dskip),
        }
    _A_in = _A_setup()

    def _B_setup():
        B, S, D, F = 1, 2048, 512, 1376
        return {
            "x": _w((lambda *s: torch.randn(*s, dtype=torch.bfloat16) * 0.05)(B, S, D)),
            "w1": _w((lambda *s: torch.randn(*s, dtype=torch.bfloat16) * 0.4)(S, F) * (S ** -0.5)),
            "b1": _w((lambda *s: torch.randn(*s, dtype=torch.bfloat16) * 3.2)(F) * 0.02),
            "w2": _w((lambda *s: torch.randn(*s, dtype=torch.bfloat16) * 0.8)(F, S) * (F ** -0.5)),
            "b2": _w((lambda *s: torch.randn(*s, dtype=torch.bfloat16) * 1.6)(S) * 0.02),
        }
    _B_in = _B_setup()

    return {
        "A_x": _A_in["x"],
        "A_Lambda_re": _A_in["Lambda_re"],
        "A_Lambda_im": _A_in["Lambda_im"],
        "A_B_re": _A_in["B_re"],
        "A_B_im": _A_in["B_im"],
        "A_C_re": _A_in["C_re"],
        "A_C_im": _A_in["C_im"],
        "A_log_dt": _A_in["log_dt"],
        "A_Dskip": _A_in["Dskip"],
        "B_x": _B_in["x"],
        "B_w1": _B_in["w1"],
        "B_b1": _B_in["b1"],
        "B_w2": _B_in["w2"],
        "B_b2": _B_in["b2"],
    }

def reference(A_x, A_Lambda_re, A_Lambda_im, A_B_re, A_B_im, A_C_re, A_C_im, A_log_dt, A_Dskip, B_x, B_w1, B_b1, B_w2, B_b2):
    def _A_ref(x, Lambda_re, Lambda_im, B_re, B_im, C_re, C_im, log_dt, Dskip):
        Bsz, L, H = x.shape
        Lam = Lambda_re + 1j * Lambda_im
        Bmat = B_re + 1j * B_im
        Cmat = C_re + 1j * C_im
        dt = torch.exp(log_dt)
        Lam_bar = torch.exp(dt * Lam)
        B_bar = ((Lam_bar - 1.0) / Lam)[:, None] * Bmat
        Bu = torch.einsum("bld,pd->blp", x + 0j, B_bar)
        h = torch.zeros_like(Bu[:, 0, :])
        hs = []
        for t in range(L):
            h = Lam_bar[None, :] * h + Bu[:, t, :]
            hs.append(h)
        hseq = torch.stack(hs, 1)
        y = 2.0 * torch.einsum("blp,dp->bld", hseq, Cmat).real + x * Dskip[None, None, :]
        return y

    def _B_ref(x, w1, b1, w2, b2):
        B, S, D = x.shape
        h = _layernorm(x, axis=-1)
        u = torch.einsum("bsd,sf->bdf", h, w1) + b1
        u = _gelu(u)
        y = torch.einsum("bdf,fs->bds", u, w2) + b2
        return (lambda x, *d: x.permute(*d))(y, 0, 2, 1)

    x = A_x
    xn = _layernorm(x, axis=-1)
    s = _A_ref(xn, A_Lambda_re, A_Lambda_im, A_B_re, A_B_im, A_C_re, A_C_im, A_log_dt, A_Dskip)
    g = _silu(_B_ref(xn, B_w1, B_b1, B_w2, B_b2))
    return x + s * g
```

```python
NAME = "recurrent_scan__ssm_conv_s5__mixer_token_mlp__prompt"
HEADER_COMMENT = open("cdna_kernels/%s.s.ref" % NAME).read().split("; Override launch geometry")[0]

class K:
    def __init__(self, name, grid, block, lds, vgpr=256, sgpr=102, agpr=0):
        self.name, self.grid, self.block, self.lds = name, grid, block, lds
        self.vgpr, self.sgpr, self.agpr = vgpr, sgpr, agpr
        self.lines = []
        self.nlab = 0
    def __call__(self, s):
        for l in s.strip("\n").split("\n"):
            self.lines.append("    " + l.strip() if not l.strip().endswith(":") else l.strip())
    def lab(self, base="L"):
        self.nlab += 1
        return f"{self.name}_{base}{self.nlab}"
    def label(self, l):
        self.lines.append(l + ":")
    def srd(self, d, base, nbytes):
        self(f"s_mov_b32 s{d}, s{base}\ns_and_b32 s{d+1}, s{base+1}, 0xffff\ns_mov_b32 s{d+2}, {nbytes}\ns_mov_b32 s{d+3}, 0x20000")
    prof = False
    nstamp = 0
    def stamp(self):
        if not self.prof: return
        i = self.nstamp; self.nstamp += 1
        assert i < 11
        self(f"s_memrealtime s[{80+2*i}:{81+2*i}]")
    def stamp_flush(self, wsbase, off, wave_sgpr):
        if not self.prof: return
        self("s_waitcnt lgkmcnt(0) vmcnt(0)")
        self(f"s_memrealtime s[{80+2*self.nstamp}:{81+2*self.nstamp}]"); self.nstamp += 1
        self(f"s_lshl_b32 s76, s2, 2\ns_add_u32 s76, s76, s{wave_sgpr}\ns_lshl_b32 s76, s76, 6\ns_add_u32 s76, s76, {off}")
        self(f"s_add_u32 s78, s{wsbase}, s76\ns_addc_u32 s79, s{wsbase+1}, 0\ns_mov_b64 exec, 1\nv_mov_b32 v126, 0\ns_waitcnt lgkmcnt(0)")
        for i in range(self.nstamp):
            self(f"v_mov_b32 v127, s{80+2*i}\nglobal_store_dword v126, v127, s[78:79] offset:{4*i}")
    def text(self):
        acc = (self.vgpr + 3) // 4 * 4
        nfv = acc + self.agpr if self.agpr else self.vgpr
        import hazard
        fixed, added = hazard.fix(self.lines)
        self.nops_added = added
        body = "\n".join(fixed)
        code = f""".globl {self.name}
.p2align 8
.type {self.name},@function
{self.name}:
{body}
    s_endpgm
"""
        desc = f""".p2align 6
.amdhsa_kernel {self.name}
  .amdhsa_next_free_vgpr {nfv}
  .amdhsa_next_free_sgpr {self.sgpr}
  .amdhsa_accum_offset {acc}
  .amdhsa_group_segment_fixed_size 0
  .amdhsa_kernarg_size 136
  .amdhsa_user_sgpr_count 2
  .amdhsa_user_sgpr_kernarg_segment_ptr 1
  .amdhsa_system_sgpr_workgroup_id_x 1
  .amdhsa_float_denorm_mode_32 3
.end_amdhsa_kernel
"""
        return code, desc

def write_file(path, kernels, launches=None):
    launches = launches or kernels
    out = HEADER_COMMENT
    if len(launches) == 1 and launches[0].name == NAME + "_kernel":
        k = launches[0]
        out += f"; @launch grid=({k.grid},1,1) block=({k.block},1,1) lds={k.lds}\n"
    else:
        for k in launches:
            out += f"; @launch kernel={k.name} grid=({k.grid},1,1) block=({k.block},1,1) lds={k.lds}\n"
    out += '.amdgcn_target "amdgcn-amd-amdhsa--gfx950"\n.text\n'
    descs = []
    for k in kernels:
        c, d = k.text()
        out += c
        descs.append(d)
    out += '.section .rodata,"a"\n' + "".join(descs)
    open(path, "w").write(out)
```

```python
import re
REG = re.compile(r'(?<![\w.])([vas])(?:(\d+)|\[(\d+):(\d+)\])(?![\w])')
TRANS = ("v_exp_f32","v_log_f32","v_rcp_f32","v_rsq_f32","v_sqrt_f32","v_sin_f32","v_cos_f32","v_rcp_iflag_f32")
def regs(tok):
    out = set()
    for m in REG.finditer(tok):
        c = m.group(1)
        if m.group(2) is not None: out.add((c, int(m.group(2))))
        else:
            for i in range(int(m.group(3)), int(m.group(4)) + 1): out.add((c, i))
    if re.search(r'\bvcc\b', tok): out |= {('s', 1000), ('s', 1001)}
    if re.search(r'\bvcc_lo\b', tok): out |= {('s', 1000)}
    if re.search(r'\bvcc_hi\b', tok): out |= {('s', 1001)}
    if re.search(r'\bexec\b', tok): out |= {('s', 1002), ('s', 1003)}
    if re.search(r'\bm0\b', tok): out.add(('s', 1004))
    return out
def split_ops(s):
    ops, d, cur = [], 0, ""
    for ch in s:
        if ch in "[(": d += 1
        if ch in "])": d -= 1
        if ch == "," and d == 0: ops.append(cur.strip()); cur = ""
        else: cur += ch
    if cur.strip(): ops.append(cur.strip())
    return ops
class I:
    def __init__(self, line):
        self.line = line
        t = line.split(";")[0].strip()
        self.label = t.endswith(":")
        self.op = t.split()[0] if t else ""
        rest = t[len(self.op):].strip()
        ops = split_ops(rest)
        op = self.op
        self.w, self.r = set(), set()
        self.valu = op.startswith("v_") and not op.startswith("v_mfma")
        self.mfma = op.startswith("v_mfma")
        self.salu = op.startswith("s_")
        self.vmem = op.startswith(("buffer_", "global_"))
        self.ds = op.startswith("ds_")
        self.dpp = "_dpp" in op or "quad_perm" in t or "row_" in t
        self.trans = op.replace("_e32","").replace("_e64","") in TRANS
        self.lds_dma = self.vmem and re.search(r'\blds\b', t) is not None
        self.srcC = set(); self.srcAB = set(); self.wide_store = set()
        R = [regs(o) for o in ops]
        if self.label or not op or op.startswith("."): return
        if self.mfma:
            self.w = R[0]; self.srcAB = R[1] | R[2]; self.srcC = R[3]; self.r = self.srcAB | self.srcC
            self.passes = 8 if "32x32x16" in op else 4
        elif self.valu:
            if "permlane" in op and "swap" in op: self.w = R[0] | R[1]; self.r = R[0] | R[1]
            elif op.startswith(("v_add_co", "v_sub_co", "v_addc_co", "v_subb_co", "v_mad_u64", "v_div_scale")):
                self.w = R[0] | R[1]; self.r = set().union(*R[2:])
            elif op == "v_nop": pass
            else:
                self.w = R[0]; self.r = set().union(*R[1:]) if len(R) > 1 else set()
                if op.startswith(("v_fmac", "v_dot2c", "v_pk_fmac", "v_writelane")) or self.dpp: self.r |= R[0]
                if op.startswith("v_cndmask") and len(R) == 3: self.r |= {('s',1000),('s',1001)}
                if op.startswith("v_cmpx"): self.w |= {('s',1002),('s',1003)}
        elif self.vmem:
            if op in ("buffer_inv", "buffer_wbl2"): pass
            elif "store" in op or ("atomic" in op and "sc0" not in t):
                self.r = set().union(*R)
                if "x4" in op or "x3" in op:
                    self.wide_store = R[0] if op.startswith("buffer") else R[1]
            elif self.lds_dma: self.r = set().union(*R) | {('s',1004)}
            else:
                self.w = R[0]; self.r = set().union(*R[1:])
                if "atomic" in op or "d16" in op: self.r |= R[0]
        elif self.ds:
            if "write" in op: self.r = set().union(*R)
            else: self.w = R[0]; self.r = set().union(*R[1:])
        elif self.salu:
            if op.startswith(("s_cmp", "s_cbranch", "s_branch", "s_waitcnt", "s_nop", "s_barrier", "s_sleep", "s_endpgm", "s_setprio")):
                self.r = set().union(*R) if R else set()
            else:
                self.w = R[0] if R else set(); self.r = set().union(*R[1:]) if len(R) > 1 else set()
                if "saveexec" in op: self.w |= {('s',1002),('s',1003)}
    def states(self):
        if self.label or not self.op or self.op.startswith("."): return 0
        if self.op == "s_nop": return int(self.line.split(";")[0].split()[1], 0) + 1
        return 1
def isv(s): return {x for x in s if x[0] in "va"}
def iss(s): return {x for x in s if x[0] == "s"}
def need(p, c):
    n = 0
    if p.valu:
        wv, ws = isv(p.w), iss(p.w)
        if c.valu and c.dpp and wv & c.r: n = max(n, 2)
        if c.valu and "permlane" in c.op and wv & c.r: n = max(n, 2)
        if c.valu and c.op.startswith(("v_readlane", "v_readfirstlane")) and wv & c.r: n = max(n, 1)
        if c.mfma and wv & c.r: n = max(n, 2)
        if p.op.startswith("v_dot") and (c.valu or c.mfma or c.vmem or c.ds) and wv & (c.r | c.w) and c.op != p.op: n = max(n, 3)
        if p.trans and (c.valu or c.mfma) and not c.trans and wv & c.r: n = max(n, 1)
        if ws:
            if c.valu and ws & c.r: n = max(n, 4 if c.op.startswith(("v_readlane","v_writelane")) else 2)
            if c.vmem and ws & c.r: n = max(n, 5)
            if c.salu and ws & c.r: n = max(n, 2)
            if ('s',1002) in ws:
                if c.mfma: n = max(n, 4)
                if c.valu and (c.dpp): n = max(n, 5)
                if c.valu and ("permlane" in c.op or "readlane" in c.op or "readfirstlane" in c.op): n = max(n, 4)
    if p.mfma:
        big = 12 if p.passes == 8 else 8
        if (c.valu and (p.w & (c.r | c.w))) or ((c.vmem or c.ds) and (p.w & (c.r | c.w))): n = max(n, big)
        if c.mfma:
            if p.w & c.srcAB: n = max(n, big)
            if p.w & c.srcC and not (p.w == c.srcC and p.passes == c.passes): n = max(n, 10 if p.passes == 8 else 6)
            if p.w & c.w and not (p.w & c.srcC): n = max(n, big)
        if c.valu and p.srcC & c.w: n = max(n, 7 if p.passes == 8 else 3)
    if p.salu and ('s',1004) in p.w and c.lds_dma: n = max(n, 1)
    if p.wide_store and (c.valu or c.mfma or c.vmem or c.ds) and p.wide_store & c.w: n = max(n, 2)
    if p.ds and "write_b128" in p.op and False: pass
    return n
def fix(lines):
    ins = [I(l) for l in lines]
    out = []; added = 0
    for c in ins:
        if not (c.label or not c.op or c.op.startswith(".")):
            d = 0; req = 0
            for p in reversed(out):
                if d >= 21: break
                if p.states() == 0: continue
                n = need(p, c)
                if n - d > req: req = n - d
                d += p.states()
            while req > 0:
                k = min(req, 16)
                out.append(I(f"    s_nop {k-1}")); req -= k; added += k
        out.append(c)
    return [i.line for i in out], added
```

```python
import sys, struct
from asmlib import *

WS_HN, WS_SK, WS_H, WS_U, WS_AGG = 0, 2 << 20, 4 << 20, 8 << 20, 10 << 20
def f2u(x): return struct.unpack("<I", struct.pack("<f", x))[0]
def fl(x): return "0x%08x" % f2u(x)
LOG2E = 1.4426950408889634

def ws_srd(k, d, wsbase, off, nbytes):
    k(f"s_add_u32 s{d}, s{wsbase}, {off}\ns_addc_u32 s{d+1}, s{wsbase+1}, 0\ns_and_b32 s{d+1}, s{d+1}, 0xffff\ns_mov_b32 s{d+2}, {nbytes}\ns_mov_b32 s{d+3}, 0x20000")

def allreduce64(k, regs, tmp):
    for mod in ("quad_perm:[1,0,3,2]", "quad_perm:[2,3,0,1]", "row_half_mirror", "row_mirror"):
        for r in regs:
            k(f"v_add_f32_dpp v{r}, v{r}, v{r} {mod} row_mask:0xf bank_mask:0xf")
    reduce_rows(k, regs, tmp)

def reduce_rows(k, regs, tmp):
    for op in ("v_permlane16_swap_b32", "v_permlane32_swap_b32"):
        for r, t in zip(regs, tmp): k(f"v_mov_b32 v{t}, v{r}")
        for r, t in zip(regs, tmp): k(f"{op} v{t}, v{r}")
        for r, t in zip(regs, tmp): k(f"v_add_f32 v{r}, v{r}, v{t}")

def bf16r(k, d, s):
    k(f"v_cvt_pk_bf16_f32 v{d}, v{s}, v{s}\nv_lshlrev_b32 v{d}, 16, v{d}")

def unpack(k, d, s):
    k(f"v_lshlrev_b32 v{d}, 16, v{s}\nv_and_b32 v{d+1}, 0xffff0000, v{s}")

def ln_rows(k, X, P, T, S):
    s0, s1, t0, t1 = S, S + 1, S + 2, S + 3
    sm = [s0, s1]; tm = [t0, t1]; mb = [S + 4, S + 5]
    for a in range(2):
        x = X[a]
        k(f"v_add_f32 v{sm[a]}, v{x}, v{x+1}\nv_add_f32 v{tm[a]}, v{x+2}, v{x+3}")
        k(f"v_add_f32 v{sm[a]}, v{sm[a]}, v{x+4}\nv_add_f32 v{tm[a]}, v{tm[a]}, v{x+5}")
        k(f"v_add_f32 v{sm[a]}, v{sm[a]}, v{x+6}\nv_add_f32 v{tm[a]}, v{tm[a]}, v{x+7}")
        k(f"v_add_f32 v{sm[a]}, v{sm[a]}, v{tm[a]}")
    allreduce64(k, sm, tm)
    for a in range(2):
        k(f"v_mul_f32 v{sm[a]}, {fl(1/512)}, v{sm[a]}")
        bf16r(k, mb[a], sm[a])
    for a in range(2):
        for i in range(8): k(f"v_sub_f32 v{T+8*a+i}, v{X[a]+i}, v{sm[a]}")
    for a in range(2):
        t = T + 8 * a
        k(f"v_mul_f32 v{sm[a]}, v{t}, v{t}\nv_mul_f32 v{tm[a]}, v{t+1}, v{t+1}")
        for i in range(2, 8, 2):
            k(f"v_fmac_f32 v{sm[a]}, v{t+i}, v{t+i}\nv_fmac_f32 v{tm[a]}, v{t+i+1}, v{t+i+1}")
        k(f"v_add_f32 v{sm[a]}, v{sm[a]}, v{tm[a]}")
    allreduce64(k, sm, tm)
    for a in range(2):
        for i in range(8): k(f"v_sub_f32 v{T+8*a+i}, v{X[a]+i}, v{mb[a]}")
    for a in range(2): k(f"v_mul_f32 v{sm[a]}, {fl(1/512)}, v{sm[a]}")
    for a in range(2): bf16r(k, sm[a], sm[a])
    for a in range(2): k(f"v_add_f32 v{sm[a]}, {fl(1e-5)}, v{sm[a]}")
    for a in range(2): bf16r(k, sm[a], sm[a])
    for a in range(2): k(f"v_sqrt_f32 v{sm[a]}, v{sm[a]}")
    for a in range(2):
        for i in range(4): k(f"v_cvt_pk_bf16_f32 v{P[a]+i}, v{T+8*a+2*i}, v{T+8*a+2*i+1}")
    for a in range(2): bf16r(k, sm[a], sm[a])
    for a in range(2): k(f"v_rcp_f32 v{sm[a]}, v{sm[a]}")
    for a in range(2):
        for i in range(4): unpack(k, T + 8 * a + 2 * i, P[a] + i)
    for a in range(2):
        for i in range(8): k(f"v_mul_f32 v{T+8*a+i}, v{T+8*a+i}, v{sm[a]}")
    for a in range(2):
        for i in range(4): k(f"v_cvt_pk_bf16_f32 v{P[a]+i}, v{T+8*a+2*i}, v{T+8*a+2*i+1}")
    for a in range(2):
        for i in range(4): unpack(k, X[a] + 2 * i, P[a] + i)

def cmul(k, dr, di, ar, ai, br, bi):
    k(f"v_mul_f32 v{dr}, v{ar}, v{br}\nv_mul_f32 v{di}, v{ar}, v{bi}\nv_fma_f32 v{dr}, -v{ai}, v{bi}, v{dr}\nv_fma_f32 v{di}, v{ai}, v{br}, v{di}")
def cfma(k, dr, di, ar, ai, br, bi, cr, ci):
    k(f"v_fma_f32 v{dr}, v{ar}, v{br}, v{cr}\nv_fma_f32 v{di}, v{ar}, v{bi}, v{ci}\nv_fma_f32 v{dr}, -v{ai}, v{bi}, v{dr}\nv_fma_f32 v{di}, v{ai}, v{br}, v{di}")
def csq(k, dr, di, ar, ai):
    k(f"v_mul_f32 v{dr}, v{ar}, v{ar}\nv_add_f32 v{di}, v{ar}, v{ar}\nv_fma_f32 v{dr}, -v{ai}, v{ai}, v{dr}\nv_mul_f32 v{di}, v{di}, v{ai}")

WS_PROF = 16 << 20
def gen_k1(nopoll=False, prof=False):
    LDS_X, LDS_B, LDS_T, LDS_ST = 0, 65536, 131072, 131072 + 8 * 1088 + 64 - (8 * 1088) % 64
    LDS_ST = 131072 + 8704
    k = K("k1_kernel", 256, 256, LDS_ST + 512, vgpr=256, agpr=128)
    end = "k1_end"
    k.prof = prof
    k(f"s_cmp_ge_u32 s2, 256\ns_cbranch_scc1 {end}")
    k.stamp()
    k("s_load_dwordx4 s[4:7], s[0:1], 0\ns_load_dwordx4 s[8:11], s[0:1], 16\ns_load_dwordx2 s[12:13], s[0:1], 32")
    k("s_load_dwordx4 s[16:19], s[0:1], 56\ns_load_dwordx4 s[20:23], s[0:1], 120")
    k("v_and_b32 v1, 63, v0\nv_lshrrev_b32 v2, 6, v0\nv_readfirstlane_b32 s62, v2")
    k("v_and_b32 v2, 15, v1\nv_lshrrev_b32 v3, 4, v1")
    k("s_and_b32 s56, s2, 3\ns_lshl_b32 s56, s56, 3\ns_bfe_u32 s57, s2, 0x30003\ns_add_u32 s60, s56, s57")
    k("s_bfe_u32 s56, s2, 0x10002\ns_lshl_b32 s56, s56, 2\ns_lshr_b32 s57, s2, 6\ns_add_u32 s61, s56, s57")
    k("v_lshrrev_b32 v28, 3, v1\nv_and_b32 v29, 7, v1")
    for rg in range(2):
        k(f"v_add_u32 v30, {4*rg}, v3\nv_xor_b32 v30, v29, v30\nv_lshlrev_b32 v30, 4, v30")
        k(f"v_add_u32 v31, {8*rg}, v28\nv_lshl_add_u32 v{6+rg}, v31, 10, v30")
        k(f"v_lshrrev_b32 v31, 5, v1\nv_add_u32 v31, {2*rg}, v31\nv_lshlrev_b32 v31, 4, v31\nv_and_b32 v27, 3, v28\nv_add_u32 v31, v31, v27\nv_lshl_add_u32 v{4+rg}, v31, 10, v30")
    k("v_lshrrev_b32 v30, 1, v2\nv_xor_b32 v30, v30, v3\nv_lshlrev_b32 v30, 4, v30\nv_lshl_add_u32 v8, v2, 7, v30\nv_xor_b32 v9, 64, v8")
    k(f"s_lshl_b32 s63, s62, 14\ns_add_u32 s63, s63, {LDS_B}")
    k("v_add_u32 v10, s63, v8\nv_add_u32 v11, s63, v9")
    k("v_lshlrev_b32 v27, 4, v1")
    k("s_waitcnt lgkmcnt(0)")
    k.srd(24, 4, 2 << 20); k.srd(28, 10, 512 << 10); k.srd(32, 12, 512 << 10)
    k("s_lshl_b32 s56, s60, 6\ns_lshl_b32 s57, s61, 3\ns_add_u32 s56, s56, s57\ns_lshl_b32 s57, s62, 1\ns_add_u32 s64, s56, s57\ns_lshl_b32 s64, s64, 10")
    k("buffer_load_dwordx4 v[12:15], v27, s[24:27], s64 offen\nbuffer_load_dwordx4 v[16:19], v27, s[24:27], s64 offen offset:1024")
    k("global_load_dwordx4 v[20:23], v27, s[18:19]")
    k("s_lshl_b32 s56, s61, 6\ns_lshl_b32 s57, s62, 4\ns_add_u32 s65, s56, s57")
    k("v_add_u32 v30, s65, v2\nv_lshlrev_b32 v30, 1, v30")
    k("global_load_ushort v24, v30, s[6:7]\nglobal_load_ushort v25, v30, s[8:9]\nglobal_load_ushort v26, v30, s[16:17]")
    k("s_lshl_b32 s66, s65, 10")
    def b_dma(kc):
        for part in range(2):
            for rg in range(2):
                slot = (part * 4 + (kc & 3)) * 2048 + rg * 1024
                k(f"s_add_u32 m0, s63, {slot}\ns_add_u32 s56, s66, {kc*128}\nbuffer_load_dwordx4 v{6+rg}, s[{28+4*part}:{31+4*part}], s56 offen lds")
    for kc in range(4): b_dma(kc)
    k("s_lshl_b32 s67, s60, 16\ns_lshl_b32 s56, s62, 12\ns_add_u32 s67, s67, s56")
    k("s_lshl_b32 s68, s62, 11")
    for kc in range(8):
        for rg in range(2):
            k(f"s_add_u32 m0, s68, {LDS_X + kc*8192 + rg*1024}\ns_add_u32 s56, s67, {kc*128}\nbuffer_load_dwordx4 v{4+rg}, s[24:27], s56 offen lds")
    ws_srd(k, 36, 22, WS_HN, 2 << 20); ws_srd(k, 40, 22, WS_SK, 2 << 20); ws_srd(k, 44, 22, WS_H, 4 << 20)
    k(f"s_lshl_b32 s56, s61, 2\ns_add_u32 s69, s56, s62\ns_lshl_b32 s56, s69, 12\ns_add_u32 s56, s56, {WS_AGG}")
    k("s_add_u32 s48, s22, s56\ns_addc_u32 s49, s23, 0\ns_and_b32 s49, s49, 0xffff\ns_mov_b32 s50, 4096\ns_mov_b32 s51, 0x20000")
    k.srd(52, 20, 256)
    k("s_waitcnt vmcnt(32)")
    k.stamp()
    X = [32, 40]; P = [12, 16]; T = 48; S = 140
    for a in range(2):
        for i in range(4): unpack(k, X[a] + 2 * i, P[a] + i)
    ln_rows(k, X, P, T, S)
    for i in range(4): unpack(k, 150 + 2 * i, 20 + i)
    for a in range(2):
        for i in range(8): k(f"v_mul_f32 v{T+8*a+i}, v{X[a]+i}, v{150+i}")
        for i in range(4): k(f"v_cvt_pk_bf16_f32 v{160+4*a+i}, v{T+8*a+2*i}, v{T+8*a+2*i+1}")
    k("buffer_store_dwordx4 v[160:163], v27, s[40:43], s64 offen\nbuffer_store_dwordx4 v[164:167], v27, s[40:43], s64 offen offset:1024")
    ln_rows(k, X, P, T, S)
    k(f"s_mul_i32 s56, s62, {2*1088}\ns_add_u32 s56, s56, {LDS_T}\nv_add_u32 v30, s56, v27")
    k("ds_write_b128 v30, v[12:15]\nds_write_b128 v30, v[16:19] offset:1088")
    k(f"v_lshrrev_b32 v30, 2, v2\nv_mul_u32_u24 v30, 1088, v30\nv_and_b32 v31, 3, v1\nv_lshl_add_u32 v30, v31, 3, v30\nv_lshl_add_u32 v30, v3, 5, v30")
    k(f"s_lshl_b32 s56, s62, 8\ns_add_u32 s56, s56, {LDS_T}\nv_add_u32 v30, s56, v30")
    k("s_waitcnt lgkmcnt(0)\ns_barrier")
    for q in range(2):
        k(f"ds_read_b64_tr_b16 v[{168+4*q}:{169+4*q}], v30 offset:{q*128}\nds_read_b64_tr_b16 v[{170+4*q}:{171+4*q}], v30 offset:{q*128+4*1088}")
    k("s_lshl_b32 s56, s60, 3\ns_add_u32 s56, s56, s61\ns_lshl_b32 s56, s56, 13\ns_lshl_b32 s57, s62, 11\ns_add_u32 s56, s56, s57")
    k("s_waitcnt lgkmcnt(0)")
    k("buffer_store_dwordx4 v[168:171], v27, s[36:39], s56 offen\nbuffer_store_dwordx4 v[172:175], v27, s[36:39], s56 offen offset:1024")
    def b_read(kc):
        for part in range(2):
            for h in range(2):
                st = 2 * kc + h; a = (part * 16 + st) * 4
                k(f"ds_read_b128 a[{a}:{a+3}], v{10+h} offset:{(part*4+(kc&3))*2048}")
    k.stamp()
    k("s_waitcnt vmcnt(20)")
    k.stamp()
    for kc in range(4): b_read(kc)
    LR, LI, CR, CI = 204, 205, 206, 207
    L16, L64, L512 = 208, 210, 212
    k("v_lshlrev_b32 v24, 16, v24\nv_lshlrev_b32 v25, 16, v25\nv_lshlrev_b32 v26, 16, v26")
    k(f"v_mul_f32 v26, {fl(LOG2E)}, v26\nv_exp_f32 v26, v26")
    bf16r(k, 26, 26)
    k(f"v_mul_f32 v32, v26, v24\nv_mul_f32 v33, v26, v25")
    k(f"v_mul_f32 v32, {fl(LOG2E)}, v32\nv_mul_f32 v33, 0.15915494309189535, v33\nv_exp_f32 v32, v32\nv_rndne_f32 v34, v33\nv_sub_f32 v33, v33, v34")
    k(f"v_cos_f32 v34, v33\nv_sin_f32 v35, v33\nv_mul_f32 v{LR}, v32, v34\nv_mul_f32 v{LI}, v32, v35")
    k(f"v_mul_f32 v36, v24, v24\nv_fmac_f32 v36, v25, v25\nv_rcp_f32 v36, v36\nv_add_f32 v37, -1.0, v{LR}")
    k(f"v_mul_f32 v38, v37, v24\nv_fmac_f32 v38, v{LI}, v25\nv_mul_f32 v39, v{LI}, v24\nv_fma_f32 v39, -v37, v25, v39\nv_add_f32 v36, v36, v36")
    k(f"v_mul_f32 v{CR}, v38, v36\nv_mul_f32 v{CI}, v39, v36")
    seq = [(LR, LI), (32, 33), (34, 35), (32, 33), (L16, L16 + 1), (32, 33), (L64, L64 + 1), (32, 33), (34, 35), (L512, L512 + 1)]
    for a, b in zip(seq[:-1], seq[1:]): csq(k, b[0], b[1], a[0], a[1])
    k("s_waitcnt lgkmcnt(0)")
    for kc in range(4, 8): b_dma(kc)
    k("v_lshrrev_b32 v30, 1, v2\nv_lshlrev_b32 v30, 4, v30\nv_lshl_add_u32 v30, v2, 7, v30\nv_lshl_add_u32 v30, v3, 14, v30\nv_add_u32 v30, s68, v30")
    for i in range(1, 8): k(f"v_xor_b32 v{32+i}, {i*16}, v30")
    k("v_mov_b32 v32, v30")
    k("v_mov_b32 v104, 0x3f803f80\nv_mov_b32 v105, 0x3f803f80\nv_mov_b32 v106, 0x3f803f80\nv_mov_b32 v107, 0x3f803f80")
    k("s_waitcnt vmcnt(20)\ns_barrier")
    k.stamp()
    if prof: k("s_waitcnt lgkmcnt(0)")
    RAW = 140
    for e in range(2):
        for i in range(8):
            r = RAW + (e * 8 + i) * 4
            k(f"ds_read_b128 v[{r}:{r+3}], v{32+i} offset:{LDS_X + e*8192}")
    AF = 108
    def a_read(st):
        for m in range(4):
            r = AF + (st & 1) * 16 + m * 4
            k(f"ds_read_b128 v[{r}:{r+3}], v{8 + (st & 1)} offset:{LDS_X + (st >> 1) * 8192 + m * 2048}")
    a_read(0)
    F = K("f", 0, 0, 0)
    F("v_mov_b32 v40, 0\nv_mov_b32 v41, 0")
    for i in range(64): F(f"v_dot2_f32_bf16 v{40 + (i & 1)}, v{RAW+i}, v104, v{40 + (i & 1)}")
    F("v_add_f32 v40, v40, v41")
    reduce_rows(F, [40], [41])
    F(f"v_mul_f32 v40, {fl(1/512)}, v40\nv_mov_b32 v42, 0\nv_mov_b32 v43, 0")
    for i in range(64):
        t = 44 + 2 * (i & 3)
        unpack(F, t, RAW + i)
        F(f"v_sub_f32 v{t}, v{t}, v40\nv_sub_f32 v{t+1}, v{t+1}, v40\nv_fmac_f32 v42, v{t}, v{t}\nv_fmac_f32 v43, v{t+1}, v{t+1}")
    F("v_add_f32 v42, v42, v43")
    reduce_rows(F, [42], [43])
    F(f"v_mul_f32 v42, {fl(1/512)}, v42")
    bf16r(F, 42, 42); F(f"v_add_f32 v42, {fl(1e-5)}, v42"); bf16r(F, 42, 42); F("v_sqrt_f32 v42, v42"); bf16r(F, 42, 42); F("v_rcp_f32 v42, v42")
    bf16r(F, 40, 40)
    fill = list(F.lines)
    ARE, AIM, CS = 64, 80, 96
    nfill = (len(fill) + 159) // 160
    first = True
    for st in range(16):
        if st == 8:
            k("s_waitcnt vmcnt(0)")
            for kc in range(4, 8): b_read(kc)
            k("s_waitcnt lgkmcnt(0)")
            if st + 1 < 16: a_read(st + 1)
        else:
            if st + 1 < 16:
                a_read(st + 1); k("s_waitcnt lgkmcnt(4)")
            else: k("s_waitcnt lgkmcnt(0)")
        for part in range(2):
            b = (part * 16 + st) * 4
            for m in range(5):
                if m < 4:
                    acc = (ARE if part == 0 else AIM) + 4 * m; a = AF + (st & 1) * 16 + 4 * m
                else:
                    acc = CS + 4 * part; a = 104
                cin = "0" if st == 0 else f"v[{acc}:{acc+3}]"
                k(f"v_mfma_f32_16x16x32_bf16 v[{acc}:{acc+3}], v[{a}:{a+3}], a[{b}:{b+3}], {cin}")
                for _ in range(nfill):
                    if fill: k(fill.pop(0))
    for l in fill: k(l)
    k.stamp()
    k(f"v_lshrrev_b32 v30, 2, v2\nv_lshlrev_b32 v30, 6, v30\nv_and_b32 v31, 3, v2\nv_lshl_add_u32 v30, v31, 2, v30\ns_lshl_b32 s56, s62, 4\ns_add_u32 s56, s56, {LDS_ST}\nv_add_u32 v30, s56, v30")
    k("ds_write_b32 v30, v40\nds_write_b32 v30, v42 offset:256")
    k(f"v_lshlrev_b32 v30, 6, v3\nv_add_u32 v30, {LDS_ST}, v30")
    k("s_waitcnt lgkmcnt(0)\ns_barrier")
    M, R = 140, 156
    for i in range(4): k(f"ds_read_b128 v[{M+4*i}:{M+4*i+3}], v30 offset:{16*i}")
    for i in range(4): k(f"ds_read_b128 v[{R+4*i}:{R+4*i+3}], v30 offset:{256+16*i}")
    KR, KI = 32, 33
    cmul(k, KR, KI, CR, CI, CS, CS + 4)
    k("s_waitcnt lgkmcnt(0)")
    for i in range(16):
        ar, ai = ARE + i, AIM + i; ta, tb = 36 + 2 * (i & 1), 37 + 2 * (i & 1)
        k(f"v_mul_f32 v{ta}, v{CR}, v{ar}\nv_mul_f32 v{tb}, v{CR}, v{ai}\nv_fma_f32 v{ta}, -v{CI}, v{ai}, v{ta}\nv_fma_f32 v{tb}, v{CI}, v{ar}, v{tb}")
        k(f"v_fma_f32 v{ta}, -v{M+i}, v{KR}, v{ta}\nv_fma_f32 v{tb}, -v{M+i}, v{KI}, v{tb}")
        if i == 0:
            k(f"v_mul_f32 v{ar}, v{R+i}, v{ta}\nv_mul_f32 v{ai}, v{R+i}, v{tb}")
        else:
            k(f"v_mul_f32 v{ta}, v{R+i}, v{ta}\nv_mul_f32 v{tb}, v{R+i}, v{tb}")
            k(f"v_fma_f32 v{ta}, -v{LI}, v{ai-1}, v{ta}\nv_fma_f32 v{tb}, v{LI}, v{ar-1}, v{tb}")
            k(f"v_fma_f32 v{ar}, v{LR}, v{ar-1}, v{ta}\nv_fma_f32 v{ai}, v{LR}, v{ai-1}, v{tb}")
    k(f"v_mov_b32 v40, v{ARE+15}\nv_mov_b32 v41, v{AIM+15}\nv_lshlrev_b32 v30, 3, v1\nv_add_u32 v30, s63, v30\nv_lshlrev_b32 v31, 3, v2\nv_add_u32 v31, s63, v31")
    k("ds_write_b64 v30, v[40:41]")
    E = 44
    for g in range(4): k(f"ds_read_b64 v[{E+2*g}:{E+2*g+1}], v31 offset:{128*g}")
    k("s_waitcnt lgkmcnt(0)")
    cfma(k, 52, 53, L16, L16 + 1, E, E + 1, E + 2, E + 3)
    cfma(k, 54, 55, L16, L16 + 1, 52, 53, E + 4, E + 5)
    cfma(k, 56, 57, L16, L16 + 1, 54, 55, E + 6, E + 7)
    k.stamp()
    k("s_sub_u32 s56, 31, s60\ns_lshl_b32 s56, s56, 7\nv_lshlrev_b32 v58, 3, v2")
    k("s_mov_b64 exec, 0xffff\nbuffer_store_dwordx2 v[56:57], v58, s[48:51], s56 offen sc1\ns_waitcnt vmcnt(0)")
    k("s_lshl_b32 s57, 1, s60\nv_mov_b32 v59, s57\ns_lshl_b32 s58, s69, 2\nv_mov_b32 v60, s58\ns_mov_b64 exec, 1")
    k.stamp()
    if nopoll: k("s_branch k1_ready")
    k("buffer_atomic_or v59, v60, s[52:55], 0 offen sc1")
    k("s_sub_u32 s57, s57, 1\ns_mov_b32 s59, 0")
    k.label("k1_poll")
    k("buffer_load_dword v59, v60, s[52:55], 0 offen sc1\ns_waitcnt vmcnt(0)\nv_readfirstlane_b32 s58, v59\ns_add_u32 s59, s59, 1\ns_and_b32 s58, s58, s57\ns_cmp_eq_u32 s58, s57\ns_cbranch_scc1 k1_ready")
    k("s_cmp_lt_u32 s59, 0x40000\ns_cbranch_scc1 k1_poll")
    k.label("k1_ready")
    k("s_mov_b64 exec, -1")
    k.stamp()
    k("s_sub_u32 s56, 32, s60\ns_lshl_b32 s56, s56, 7\nv_lshl_add_u32 v58, v3, 10, v58\nv_add_u32 v58, s56, v58")
    Q = 140
    for kk in range(8): k(f"buffer_load_dwordx2 v[{Q+2*kk}:{Q+2*kk+1}], v58, s[48:51], 0 offen offset:{128*kk} sc1")
    for g in range(3): k(f"v_cmp_lt_u32 s[{70+2*g}:{71+2*g}], {g}, v3")
    k("s_waitcnt vmcnt(0)")
    cur = (Q + 14, Q + 15)
    for kk in range(6, -1, -1):
        d = (160 + 2 * (kk & 1), 161 + 2 * (kk & 1))
        cfma(k, d[0], d[1], L64, L64 + 1, cur[0], cur[1], Q + 2 * kk, Q + 2 * kk + 1); cur = d
    k(f"ds_write_b64 v30, v[{cur[0]}:{cur[1]}]")
    for g in range(4): k(f"ds_read_b64 v[{Q+2*g}:{Q+2*g+1}], v31 offset:{128*g}")
    k("s_waitcnt lgkmcnt(0)")
    cfma(k, 160, 161, L512, L512 + 1, Q + 6, Q + 7, Q + 4, Q + 5)
    cfma(k, 162, 163, L512, L512 + 1, 160, 161, Q + 2, Q + 3)
    cfma(k, 160, 161, L512, L512 + 1, 162, 163, Q, Q + 1)
    for g in range(3):
        cfma(k, 162, 163, L16, L16 + 1, 160, 161, E + 2 * g, E + 2 * g + 1)
        k(f"v_cndmask_b32 v160, v160, v162, s[{70+2*g}:{71+2*g}]\nv_cndmask_b32 v161, v161, v163, s[{70+2*g}:{71+2*g}]")
    z = (160, 161)
    for i in range(16):
        d = (162, 163) if z[0] == 160 else (160, 161)
        cmul(k, d[0], d[1], LR, LI, z[0], z[1]); z = d
        k(f"v_add_f32 v{ARE+i}, v{ARE+i}, v{z[0]}\nv_add_f32 v{AIM+i}, v{AIM+i}, v{z[1]}")
    PK = 140
    for i in range(8): k(f"v_cvt_pk_bf16_f32 v{PK+i}, v{ARE+2*i}, v{ARE+2*i+1}")
    for i in range(8): k(f"v_cvt_pk_bf16_f32 v{PK+8+i}, -v{AIM+2*i}, -v{AIM+2*i+1}")
    RS = 144
    k(f"v_mul_u32_u24 v30, {RS}, v2\nv_lshl_add_u32 v30, v3, 5, v30\nv_add_u32 v30, s63, v30")
    for part in range(2):
        for h in range(2):
            k(f"ds_write_b128 v30, v[{PK+8*part+4*h}:{PK+8*part+4*h+3}] offset:{1024 + part*16*RS + h*16}")
    k(f"v_lshrrev_b32 v31, 2, v2\nv_mul_u32_u24 v31, {RS}, v31\nv_and_b32 v29, 3, v1\nv_lshl_add_u32 v31, v29, 3, v31\nv_lshl_add_u32 v31, v3, 5, v31\nv_add_u32 v31, s63, v31")
    O = 164
    for kb in range(4):
        k(f"ds_read_b64_tr_b16 v[{O+4*kb}:{O+4*kb+1}], v31 offset:{1024 + 8*kb*RS}\nds_read_b64_tr_b16 v[{O+4*kb+2}:{O+4*kb+3}], v31 offset:{1024 + (8*kb+4)*RS}")
    k("s_lshl_b32 s56, s65, 12\ns_lshl_b32 s57, s60, 10\ns_add_u32 s56, s56, s57")
    k("s_waitcnt lgkmcnt(0)")
    for kb in range(4):
        k(f"s_add_u32 s57, s56, {(kb >> 1) * 64 * 32768 + (kb & 1) * 32768}\nbuffer_store_dwordx4 v[{O+4*kb}:{O+4*kb+3}], v27, s[44:47], s57 offen")
    k.stamp_flush(22, WS_PROF, 62)
    k.label(end)
    return k


GELU_K1 = -2.0 * 0.7978845608028654 * LOG2E
GELU_K2 = GELU_K1 * 0.044715

def tr_addr(k, dst, perm, tmp):
    t0, t1, t2 = tmp, tmp + 1, tmp + 2
    k(f"v_lshrrev_b32 v{t0}, 5, v1\nv_bfe_u32 v{t1}, v1, 2, 2\nv_lshl_add_u32 v{t0}, v{t0}, 3, v{t1}\nv_lshlrev_b32 v{dst}, 7, v{t0}")
    if perm:
        k(f"v_bfe_u32 v{t0}, v1, 1, 1\nv_and_b32 v{t2}, 1, v1\nv_lshl_add_u32 v{t0}, v{t2}, 1, v{t0}")
    else:
        k(f"v_and_b32 v{t0}, 3, v1")
    k(f"v_bfe_u32 v{t2}, v1, 4, 1\nv_lshl_add_u32 v{t0}, v{t2}, 2, v{t0}\nv_lshl_add_u32 v{dst}, v{t0}, 3, v{dst}")
    k(f"v_bfe_u32 v{t1}, v1, 3, 1\nv_lshlrev_b32 v{t1}, 6, v{t1}\nv_xor_b32 v{dst}, v{dst}, v{t1}\nv_xor_b32 v{dst+1}, 64, v{dst}")

def w_dma_voff(k, dst, stride, tmp):
    t0, t1 = tmp, tmp + 1
    k(f"v_lshrrev_b32 v{t0}, 3, v1\nv_mul_u32_u24 v{dst}, {stride}, v{t0}\nv_bfe_u32 v{t0}, v1, 4, 1\nv_lshlrev_b32 v{t0}, 2, v{t0}\nv_and_b32 v{t1}, 7, v1\nv_xor_b32 v{t0}, v{t0}, v{t1}")
    k(f"v_lshl_add_u32 v{dst}, v{t0}, 4, v{dst}\nv_add_u32 v{dst+1}, {8*stride-1024}, v{dst}")

def gemm_tr(k, nsteps, D, ACC, XR, WF, vX, srdX, sX, xstep, vW, srdW, sW, wstep, sRing, vTR, w_is_A, pre=0, aux="", first_zero=True):
    def issue(st):
        slot = st % D
        k(f"s_add_u32 m0, s{sRing}, {slot*2048}")
        x = XR + 8 * slot
        k(f"buffer_load_dwordx4 a[{x}:{x+3}], v{vX}, s[{srdX}:{srdX+3}], s{sX} offen {aux}\nbuffer_load_dwordx4 a[{x+4}:{x+7}], v{vX}, s[{srdX}:{srdX+3}], s{sX} offen offset:512 {aux}")
        k(f"buffer_load_dwordx4 v{vW}, s[{srdW}:{srdW+3}], s{sW} offen lds\nbuffer_load_dwordx4 v{vW+1}, s[{srdW}:{srdW+3}], s{sW} offen offset:1024 lds")
        k(f"s_add_u32 s{sX}, s{sX}, {xstep}\ns_add_u32 s{sW}, s{sW}, {wstep}")
    def trread(st):
        slot = st % D; wf = WF + 8 * (st & 1)
        for fh in range(2):
            k(f"ds_read_b64_tr_b16 v[{wf+4*fh}:{wf+4*fh+1}], v{vTR+fh} offset:{slot*2048}\nds_read_b64_tr_b16 v[{wf+4*fh+2}:{wf+4*fh+3}], v{vTR+fh} offset:{slot*2048+512}")
    issued = 0
    for st in range(min(D, nsteps)): issue(st); issued += 1
    k(f"s_waitcnt vmcnt({4*(issued-1)})"); trread(0)
    for st in range(nsteps):
        if st + 1 < nsteps:
            k(f"s_waitcnt vmcnt({4*(issued-(st+2))})"); trread(st + 1); k("s_waitcnt lgkmcnt(4)")
        else: k("s_waitcnt lgkmcnt(0)")
        wf = WF + 8 * (st & 1); x = XR + 8 * (st % D)
        for wi in range(2):
            for xi in range(2):
                acc = ACC + 16 * ((2 * wi + xi) if w_is_A else (2 * xi + wi))
                W = f"v[{wf+4*wi}:{wf+4*wi+3}]"; X = f"a[{x+4*xi}:{x+4*xi+3}]"
                cin = "0" if (st == 0 and first_zero) else f"a[{acc}:{acc+15}]"
                A, B = (W, X) if w_is_A else (X, W)
                k(f"v_mfma_f32_32x32x16_bf16 a[{acc}:{acc+15}], {A}, {B}, {cin}")
        if issued < nsteps: issue(issued); issued += 1

def gen_k2(prof=False, exact=True):
    D = 8
    k = K("k2_kernel", 176, 256, 65536, vgpr=128, agpr=128)
    k.prof = prof
    end = "k2_end"
    k(f"s_cmp_ge_u32 s2, 176\ns_cbranch_scc1 {end}")
    k.stamp()
    k("s_load_dwordx4 s[4:7], s[0:1], 80\ns_load_dwordx2 s[22:23], s[0:1], 128")
    k("v_and_b32 v1, 63, v0\nv_lshrrev_b32 v2, 6, v0\nv_readfirstlane_b32 s62, v2")
    k("s_bfe_u32 s56, s2, 0x20001\ns_mul_i32 s56, s56, 22\ns_lshr_b32 s57, s2, 3\ns_add_u32 s56, s56, s57\ns_lshr_b32 s60, s56, 2")
    k("s_and_b32 s56, s56, 3\ns_and_b32 s57, s2, 1\ns_lshl_b32 s57, s57, 2\ns_add_u32 s61, s56, s57")
    k("v_and_b32 v2, 31, v1\nv_lshlrev_b32 v2, 4, v2\nv_lshrrev_b32 v3, 5, v1\nv_lshl_add_u32 v4, v3, 13, v2")
    w_dma_voff(k, 6, 2752, 20)
    tr_addr(k, 8, True, 20)
    k("s_lshl_b32 s63, s62, 14\nv_add_u32 v8, s63, v8\nv_add_u32 v9, s63, v9")
    k("s_lshl_b32 s64, s62, 19\ns_lshl_b32 s56, s61, 10\ns_add_u32 s64, s64, s56")
    k(f"s_mul_i32 s65, s62, {512*2752}\ns_lshl_b32 s56, s60, 7\ns_add_u32 s65, s65, s56")
    k("s_waitcnt lgkmcnt(0)")
    k.srd(24, 4, 2048 * 2752); k.srd(28, 6, 2752)
    ws_srd(k, 36, 22, WS_HN, 2 << 20); ws_srd(k, 40, 22, WS_U, 176 * 8192)
    k("s_lshl_b32 s56, s60, 7\ns_lshr_b32 s57, s62, 1\ns_lshl_b32 s57, s57, 6\ns_add_u32 s66, s56, s57\nv_lshlrev_b32 v5, 4, v3")
    k("buffer_load_dwordx4 v[12:15], v5, s[28:31], s66 offen\nbuffer_load_dwordx4 v[16:19], v5, s[28:31], s66 offen offset:32")
    gemm_tr(k, 32, D, 0, 64, 24, 4, 36, 64, 16384, 6, 24, 65, 16 * 2752, 63, 8, True)
    k.stamp()
    k("v_lshlrev_b32 v10, 4, v1\nv_add_u32 v11, s63, v10\ns_lshl_b32 s56, s62, 12\nv_add_u32 v10, s56, v10")
    for i in range(16): k(f"ds_write_b128 v11, a[{4*i}:{4*i+3}] offset:{1024*i}")
    k("s_waitcnt lgkmcnt(0)\ns_barrier")
    R = 64
    for src in range(4):
        for q in range(4): k(f"ds_read_b128 v[{R+16*src+4*q}:{R+16*src+4*q+3}], v10 offset:{16384*src+1024*q}")
    for i in range(8): unpack(k, 40 + 2 * i, 12 + i)
    k("s_waitcnt lgkmcnt(8)")
    for i in range(16): k(f"v_add_f32 v{R+i}, v{R+i}, v{R+16+i}")
    k("s_waitcnt lgkmcnt(0)")
    for i in range(16): k(f"v_add_f32 v{R+32+i}, v{R+32+i}, v{R+48+i}")
    for i in range(16): k(f"v_add_f32 v{R+i}, v{R+i}, v{R+32+i}")
    def rnd(base):
        for i in range(8): k(f"v_cvt_pk_bf16_f32 v{24+i}, v{base+2*i}, v{base+2*i+1}")
        for i in range(8): unpack(k, base + 2 * i, 24 + i)
    if exact: rnd(R)
    for i in range(16): k(f"v_add_f32 v{R+i}, v{R+i}, v{40+i}")
    if exact: rnd(R)
    k(f"v_mov_b32 v20, {fl(GELU_K1)}")
    T = R + 16
    for i in range(16): k(f"v_mul_f32 v{T+i}, v{R+i}, v{R+i}")
    for i in range(16): k(f"v_fmamk_f32 v{T+i}, v{T+i}, {fl(GELU_K2)}, v20")
    for i in range(16): k(f"v_mul_f32 v{T+i}, v{T+i}, v{R+i}")
    for i in range(16): k(f"v_exp_f32 v{T+i}, v{T+i}")
    for i in range(16): k(f"v_add_f32 v{T+i}, 1.0, v{T+i}")
    for i in range(16): k(f"v_rcp_f32 v{T+i}, v{T+i}")
    for i in range(16): k(f"v_mul_f32 v{T+i}, v{T+i}, v{R+i}")
    for i in range(8): k(f"v_cvt_pk_bf16_f32 v{24+i}, v{T+2*i}, v{T+2*i+1}")
    k("s_lshl_b32 s56, s66, 9\ns_lshl_b32 s57, s61, 10\ns_add_u32 s56, s56, s57\ns_and_b32 s57, s62, 1\ns_lshl_b32 s57, s57, 9\ns_add_u32 s56, s56, s57\ns_add_u32 s57, s56, 16384")
    k("buffer_store_dwordx4 v[24:27], v4, s[40:43], s56 offen\nbuffer_store_dwordx4 v[28:31], v4, s[40:43], s57 offen")
    k.stamp_flush(22, WS_PROF + 65536, 62)
    k.label(end)
    return k

def gen_k3(prof=False, exact=True):
    D = 8
    k = K("k3_kernel", 256, 256, 131072, vgpr=128, agpr=128)
    k.prof = prof
    end = "k3_end"
    k(f"s_cmp_ge_u32 s2, 256\ns_cbranch_scc1 {end}")
    k.stamp()
    k("s_load_dwordx2 s[4:5], s[0:1], 0\ns_load_dwordx4 s[8:11], s[0:1], 40\ns_load_dwordx4 s[12:15], s[0:1], 96\ns_load_dwordx2 s[16:17], s[0:1], 112\ns_load_dwordx2 s[22:23], s[0:1], 128")
    k("v_and_b32 v1, 63, v0\nv_lshrrev_b32 v2, 6, v0\nv_readfirstlane_b32 s62, v2")
    k("s_bfe_u32 s56, s2, 0x20001\ns_lshl_b32 s56, s56, 3\ns_bfe_u32 s57, s2, 0x30003\ns_add_u32 s60, s56, s57")
    k("s_and_b32 s56, s2, 1\ns_lshl_b32 s56, s56, 2\ns_lshr_b32 s57, s2, 6\ns_add_u32 s61, s56, s57")
    k("v_and_b32 v2, 31, v1\nv_lshlrev_b32 v20, 4, v2\nv_lshrrev_b32 v3, 5, v1\nv_lshl_add_u32 v4, v3, 13, v20\nv_lshl_add_u32 v5, v3, 15, v20")
    w_dma_voff(k, 6, 4096, 20)
    tr_addr(k, 8, False, 20)
    k("s_lshl_b32 s63, s62, 15\nv_add_u32 v8, s63, v8\nv_add_u32 v9, s63, v9")
    k("v_lshrrev_b32 v20, 3, v1\nv_lshrrev_b32 v21, 4, v1\nv_and_b32 v22, 7, v1\nv_xor_b32 v21, v21, v22\nv_lshlrev_b32 v21, 4, v21\nv_lshl_add_u32 v10, v20, 10, v21\nv_xor_b32 v11, 64, v10\nv_add_u32 v11, 7168, v11")
    k("v_bfe_u32 v20, v1, 1, 3\nv_xor_b32 v20, v20, v3\nv_lshlrev_b32 v20, 4, v20\nv_lshl_add_u32 v12, v2, 7, v20\nv_add_u32 v12, s63, v12")
    for ss in range(1, 4): k(f"v_xor_b32 v{12+ss}, {32*ss}, v12")
    k("s_waitcnt lgkmcnt(0)")
    k.srd(24, 4, 2 << 20)
    k("s_cmp_lt_u32 s62, 2\ns_cselect_b32 s28, s8, s10\ns_cselect_b32 s29, s9, s11\ns_and_b32 s29, s29, 0xffff\ns_mov_b32 s30, 0x80000\ns_mov_b32 s31, 0x20000")
    k.srd(32, 12, 1376 * 4096); k.srd(52, 16, 4 << 20)
    ws_srd(k, 36, 22, WS_H, 4 << 20); ws_srd(k, 40, 22, WS_U, 172 * 8192); ws_srd(k, 44, 22, WS_SK, 2 << 20)
    k("s_lshl_b32 s64, s62, 20\ns_lshl_b32 s56, s60, 10\ns_add_u32 s64, s64, s56")
    k("s_lshl_b32 s65, s61, 16\ns_and_b32 s56, s62, 1\ns_lshl_b32 s56, s56, 9\ns_add_u32 s65, s65, s56")
    XR = 64; ACC = 0
    def c_issue(ch):
        for i in range(0, 8, 2):
            k(f"s_add_u32 m0, s63, {ch*8192 + i*1024}\ns_add_u32 s56, s65, {ch*128 + i*8192}")
            k("buffer_load_dwordx4 v10, s[28:31], s56 offen lds\nbuffer_load_dwordx4 v11, s[28:31], s56 offen offset:1024 lds")
    def h_issue(st):
        x = XR + 8 * (st % 8)
        k(f"buffer_load_dwordx4 a[{x}:{x+3}], v5, s[36:39], s64 offen\nbuffer_load_dwordx4 a[{x+4}:{x+7}], v5, s[36:39], s64 offen offset:512\ns_add_u32 s64, s64, 65536")
    order = []
    def outstanding_after(pred):
        n = 0
        for o in reversed(order):
            if pred(o): return n
            n += o[2]
        raise Exception
    for ch in range(2):
        c_issue(ch); order.append(('c', ch, 8))
        for st in range(4 * ch, 4 * ch + 4): h_issue(st); order.append(('h', st, 2))
    for ch in range(2, 4): c_issue(ch); order.append(('c', ch, 8))
    WF = 24
    def c_read(st):
        wf = WF + 8 * (st & 1)
        for dh in range(2): k(f"ds_read_b128 v[{wf+4*dh}:{wf+4*dh+3}], v{12+(st&3)} offset:{(st>>2)*8192 + dh*4096}")
    def need(st): return min(outstanding_after(lambda o: o[0] == 'c' and o[1] == st >> 2), outstanding_after(lambda o: o[0] == 'h' and o[1] == st))
    k(f"s_waitcnt vmcnt({need(0)})"); c_read(0)
    for st in range(16):
        if st + 1 < 16:
            k(f"s_waitcnt vmcnt({need(st+1)})"); c_read(st + 1); k("s_waitcnt lgkmcnt(2)")
        else: k("s_waitcnt lgkmcnt(0)")
        wf = WF + 8 * (st & 1); x = XR + 8 * (st % 8)
        for dh in range(2):
            for th in range(2):
                acc = ACC + 16 * (2 * dh + th)
                cin = "0" if st == 0 else f"a[{acc}:{acc+15}]"
                k(f"v_mfma_f32_32x32x16_bf16 a[{acc}:{acc+15}], v[{wf+4*dh}:{wf+4*dh+3}], a[{x+4*th}:{x+4*th+3}], {cin}")
        if st + 8 < 16: h_issue(st + 8); order.append(('h', st + 8, 2))
    k.stamp()
    k("v_xor_b32 v20, v2, v3\nv_lshlrev_b32 v20, 4, v20\nv_lshl_add_u32 v20, v3, 9, v20\nv_add_u32 v20, s63, v20")
    WA = 40
    for j in range(8): k(f"v_xor_b32 v{WA+j}, {32*j}, v20")
    def red_write():
        for dh in range(2):
            for th in range(2):
                for q in range(4):
                    a = ACC + 16 * (2 * dh + th) + 4 * q
                    k(f"ds_write_b128 v{WA+4*dh+q}, a[{a}:{a+3}] offset:{16384 + (2*dh+th)*4096 + q*1024}")
    red_write()
    k("v_and_b32 v20, 15, v1\nv_lshrrev_b32 v21, 4, v1")
    k("v_lshrrev_b32 v22, 3, v20\nv_lshlrev_b32 v22, 13, v22\nv_and_b32 v23, 7, v20\nv_lshl_add_u32 v22, v23, 9, v22")
    k("s_lshr_b32 s56, s62, 1\ns_lshl_b32 s56, s56, 12\ns_and_b32 s57, s62, 1\ns_lshl_b32 s57, s57, 8\ns_add_u32 s56, s56, s57\ns_add_u32 s56, s56, 16384\nv_add_u32 v22, s56, v22")
    RA = 48
    for i in range(4): k(f"v_add_u32 v23, {4*i}, v21\nv_xor_b32 v23, v23, v20\nv_lshl_add_u32 v{RA+i}, v23, 4, v22\nv_add_u32 v{RA+4+i}, 0x10000, v{RA+i}")
    k("v_lshlrev_b32 v56, 10, v21\nv_lshl_add_u32 v56, v20, 3, v56\nv_lshlrev_b32 v57, 1, v56\nv_lshlrev_b32 v58, 1, v21")
    k("s_lshl_b32 s56, s60, 6\ns_lshl_b32 s57, s62, 4\ns_add_u32 s66, s56, s57")
    k("s_lshl_b32 s67, s66, 10\ns_lshl_b32 s56, s61, 7\ns_add_u32 s67, s67, s56\ns_lshl_b32 s68, s67, 1")
    k("s_lshl_b32 s56, s66, 1\nv_add_u32 v58, s56, v58")
    XL, SL, BL = 96, 104, 112
    for i in range(4):
        k(f"s_add_u32 s56, s67, {4096*i}\nbuffer_load_dwordx2 v[{XL+2*i}:{XL+2*i+1}], v56, s[24:27], s56 offen\nbuffer_load_dwordx2 v[{SL+2*i}:{SL+2*i+1}], v56, s[44:47], s56 offen")
        k(f"global_load_ushort v{BL+i}, v58, s[14:15] offset:{8*i}")
    k("s_waitcnt lgkmcnt(0)\ns_barrier")
    def red_read(dst, tmp):
        for i in range(4): k(f"ds_read_b128 v[{dst+4*i}:{dst+4*i+3}], v{RA+i}")
        for src in range(1, 4):
            for i in range(4):
                k(f"ds_read_b128 v[{tmp+4*i}:{tmp+4*i+3}], v{RA+i+(4 if src >= 2 else 0)} offset:{32768*(src&1)}")
            k("s_waitcnt lgkmcnt(0)")
            for i in range(16): k(f"v_add_f32 v{dst+i}, v{dst+i}, v{tmp+i}")
    YC = 64
    red_read(YC, 80)
    k("s_barrier")
    k(f"s_mul_i32 s64, s62, {44*8192}\ns_lshl_b32 s56, s61, 10\ns_add_u32 s64, s64, s56")
    k(f"s_mul_i32 s65, s62, {22*16*4096}\ns_lshl_b32 s56, s60, 7\ns_add_u32 s65, s65, s56")
    gemm_tr(k, 22, D, ACC, XR, WF, 4, 40, 64, 16384, 6, 32, 65, 65536, 63, 8, False)
    k.stamp()
    red_write()
    for i in range(8):
        unpack(k, 80 + 2 * (i & 1), SL + i)
        k(f"v_add_f32 v{YC+2*i}, v{YC+2*i}, v{80+2*(i&1)}\nv_add_f32 v{YC+2*i+1}, v{YC+2*i+1}, v{81+2*(i&1)}")
    for i in range(4): k(f"v_lshlrev_b32 v{BL+i}, 16, v{BL+i}")
    k("s_waitcnt lgkmcnt(0)\ns_barrier")
    Y2 = 24
    red_read(Y2, 80)
    def rnd(base):
        for i in range(8): k(f"v_cvt_pk_bf16_f32 v{80+i}, v{base+2*i}, v{base+2*i+1}")
        for i in range(8): unpack(k, base + 2 * i, 80 + i)
    if exact: rnd(Y2)
    for i in range(16): k(f"v_add_f32 v{Y2+i}, v{Y2+i}, v{BL+(i>>2)}")
    if exact: rnd(Y2)
    T = 80
    for i in range(16): k(f"v_mul_f32 v{T+i}, {fl(-LOG2E)}, v{Y2+i}")
    for i in range(16): k(f"v_exp_f32 v{T+i}, v{T+i}")
    for i in range(16): k(f"v_add_f32 v{T+i}, 1.0, v{T+i}")
    for i in range(16): k(f"v_rcp_f32 v{T+i}, v{T+i}")
    for i in range(16): k(f"v_mul_f32 v{Y2+i}, v{T+i}, v{Y2+i}")
    if exact: rnd(Y2)
    for i in range(8): unpack(k, T + 2 * i, XL + i)
    for i in range(16): k(f"v_fmac_f32 v{T+i}, v{YC+i}, v{Y2+i}")
    for i in range(4):
        k(f"s_add_u32 s56, s68, {8192*i}\nbuffer_store_dwordx4 v[{T+4*i}:{T+4*i+3}], v57, s[52:55], s56 offen")
    k.stamp_flush(22, WS_PROF + 131072, 62)
    k.label(end)
    return k

if __name__ == "__main__":
    ks = [gen_k1(), gen_k2(), gen_k3()]
    write_file("v1.s", ks)
    write_file("v1p.s", [gen_k1(prof=True), gen_k2(prof=True), gen_k3(prof=True)])
    write_file("v1ne.s", [gen_k1(), gen_k2(exact=False), gen_k3(exact=False)])
    for q in ks: print(q.name, "nops", q.nops_added, "lines", len(q.lines))
```
